```python
import torch

def _softmax(x, axis=-1):
    return torch.softmax(x, dim=axis)
def _gelu(x):
    return torch.nn.functional.gelu(x, approximate="tanh")
def _silu(x):
    return torch.nn.functional.silu(x)
def _sigmoid(x):
    return torch.sigmoid(x)
def _layernorm(x, axis=-1, eps=1e-5):
    m = x.mean(dim=axis, keepdim=True)
    v = x.var(dim=axis, keepdim=True, unbiased=False)
    return (x - m) / torch.sqrt(v + eps)
def _scatter_add(tgt, idx, src, axis=0):
    return tgt.clone().index_add_(axis, idx, src)
def _segment_sum(src, seg, n):
    out = torch.zeros((n,) + src.shape[1:], dtype=src.dtype)
    return out.index_add_(0, seg, src)
def _pad(x, pw):
    flat = tuple(v for pair in reversed(pw) for v in pair)
    return torch.nn.functional.pad(x, flat)

kernel_name = 'concat_heads__linear_attn_block__softmax_full_mha__prompt'

def setup_inputs():

    _w = (lambda a: (lambda t: t.to(torch.bfloat16) if t.is_floating_point() else t)(torch.as_tensor(a)))
    def _A_setup():
        B, S, D = 1, 2048, 1024
        return {
            "x": _w((lambda *s: torch.randn(*s, dtype=torch.bfloat16) * 0.05)(B, S, D)),
            "wqkv": _w((lambda *s: torch.randn(*s, dtype=torch.bfloat16) * 1.6)(D, 3 * D)),
            "wo": _w((lambda *s: torch.randn(*s, dtype=torch.bfloat16) * 0.1)(D, D)),
        }
    _A_in = _A_setup()

    def _B_setup():
        B, S, D = 1, 2048, 1024
        return {
            "x": _w((lambda *s: torch.randn(*s, dtype=torch.bfloat16) * 0.2)(B, S, D)),
            "wqkv": _w((lambda *s: torch.randn(*s, dtype=torch.bfloat16) * 0.2)(D, 3 * D)),
            "wo": _w((lambda *s: torch.randn(*s, dtype=torch.bfloat16) * 0.05)(D, D)),
        }
    _B_in = _B_setup()

    return {
        "A_x": _A_in["x"],
        "A_wqkv": _A_in["wqkv"],
        "A_wo": _A_in["wo"],
        "B_x": _B_in["x"],
        "B_wqkv": _B_in["wqkv"],
        "B_wo": _B_in["wo"],
    }

def reference(A_x, A_wqkv, A_wo, B_x, B_wqkv, B_wo):
    def _A_ref(x, wqkv, wo):
        B, S, D = x.shape
        H = 32; Dh = D // H
        qkv = (lambda x, *d: x.permute(*d))((x @ wqkv).reshape(B, S, 3, H, Dh), 2, 0, 3, 1, 4)
        q, k, v = qkv[0], qkv[1], qkv[2]
        phi = lambda t: torch.where(t > 0, t + 1, torch.exp(t)) + 1e-6
        pq, pk = phi(q), phi(k)
        kv = torch.einsum("bhsd,bhse->bhde", pk, v)
        z = torch.einsum("bhsd->bhd", pk)
        num = torch.einsum("bhqd,bhde->bhqe", pq, kv)
        den = torch.einsum("bhqd,bhd->bhq", pq, z)[..., None] + 1e-6
        o = num / den
        return (lambda x, *d: x.permute(*d))(o, 0, 2, 1, 3).reshape(B, S, D) @ wo

    def _B_ref(x, wqkv, wo):
        B, S, D = x.shape
        H = 32; Dh = D // H
        qkv = (lambda x, *d: x.permute(*d))((x @ wqkv).reshape(B, S, 3, H, Dh), 2, 0, 3, 1, 4)
        q, k, v = qkv[0], qkv[1], qkv[2]
        scale = Dh ** -0.5
        scores = torch.einsum("bhqd,bhkd->bhqk", q, k) * scale
        p = _softmax(scores, axis=-1)
        o = torch.einsum("bhqk,bhkd->bhqd", p, v)
        return (lambda x, *d: x.permute(*d))(o, 0, 2, 1, 3).reshape(B, S, D) @ wo

    a = _A_ref(A_x, A_wqkv, A_wo)
    b = _B_ref(B_x, B_wqkv, B_wo)
    return torch.concatenate([a, b], axis=-1)
```

```python
import struct


def f32bits(x):
    return struct.unpack("<I", struct.pack("<f", x))[0]


def v(i, n=1):
    return f"v{i}" if n == 1 else f"v[{i}:{i + n - 1}]"


def s(i, n=1):
    return f"s{i}" if n == 1 else f"s[{i}:{i + n - 1}]"


class Asm:
    def __init__(self):
        self.lines = []

    def __call__(self, txt):
        self.lines.append("    " + txt)

    def label(self, name):
        self.lines.append(name + ":")

    def c(self, txt):
        self.lines.append("    ; " + txt)

    def raw(self, txt):
        self.lines.append(txt)

    def text(self):
        return "\n".join(self.lines) + "\n"


class VAlloc:
    def __init__(self, start=0):
        self.n = start

    def get(self, cnt=1, align=1):
        self.n = (self.n + align - 1) // align * align
        r = self.n
        self.n += cnt
        return r


def interleave(main, fill):
    out = []
    n = len(main)
    k = 0
    for i, m in enumerate(main):
        out.append(m)
        e = (len(fill) * (i + 1) + n - 1) // n if n else len(fill)
        while k < min(e, len(fill)):
            out.append(fill[k])
            k += 1
    out += fill[k:]
    return out


def srd(a, d, lo, hi, nbytes):
    a(f"s_mov_b32 s{d}, s{lo}")
    a(f"s_mov_b32 s{d + 1}, s{hi}")
    a(f"s_mov_b32 s{d + 2}, {nbytes:#x}")
    a(f"s_mov_b32 s{d + 3}, 0x20000")


def kernel_header(a, name):
    a.raw(".text")
    a.raw(f".globl {name}")
    a.raw(".p2align 8")
    a.raw(f".type {name},@function")
    a.label(name)


def kernel_desc(name, nvgpr, nsgpr):
    acc = (nvgpr + 3) // 4 * 4
    return f""".section .rodata,"a"
.p2align 6
.amdhsa_kernel {name}
  .amdhsa_next_free_vgpr {nvgpr}
  .amdhsa_next_free_sgpr {nsgpr}
  .amdhsa_accum_offset {acc}
  .amdhsa_group_segment_fixed_size 0
  .amdhsa_kernarg_size 72
  .amdhsa_user_sgpr_count 2
  .amdhsa_user_sgpr_kernarg_segment_ptr 1
  .amdhsa_system_sgpr_workgroup_id_x 1
  .amdhsa_float_denorm_mode_32 3
.end_amdhsa_kernel
"""


MB = 1 << 20
WS_QB = 0
WS_KVB = 4 * MB
WS_PQA = 12 * MB
WS_KVP = 16 * MB
WS_ZP = 17 * MB
WS_O = 20 * MB
WS_STAMP = 30 * MB
WS_SIZE = 32 * MB


class Stamper:
    BASE = 64

    def __init__(self, a, on, kidx):
        self.a, self.on, self.kidx = a, on, kidx

    def init(self):
        if self.on:
            for i in range(32):
                self.a(f"s_mov_b32 s{self.BASE + i}, 0")

    def __call__(self, i):
        if self.on:
            b = self.BASE + 4 * i
            self.a(f"s_memrealtime s[{b}:{b + 1}]")
            self.a(f"s_memtime s[{b + 2}:{b + 3}]")

    def out(self, last, sWv, sT, vT, vD, SWS):
        if not self.on:
            return
        a = self.a
        a("s_waitcnt vmcnt(0)")
        self(last)
        if isinstance(self.on, list):
            a("s_load_dwordx2 s[4:5], s[0:1], 56")
            a("s_waitcnt lgkmcnt(0)")
            Stamper.cnt = getattr(Stamper, "cnt", 0) + 1
            a(f"s_and_b32 s6, s2, 0x30")
            a(f"s_lshl_b32 s7, s{sWv}, 8")
            a("s_or_b32 s6, s6, s7")
            a(f"s_cmp_eq_u32 s6, {0x300 if self.kidx == 2 else 0x700}")
            a(f"s_cbranch_scc1 L_dbg{Stamper.cnt}")
            a("s_endpgm")
            a.label(f"L_dbg{Stamper.cnt}")
            a(f"s_add_u32 s4, s4, {512 * (2 - self.kidx)}")
            a("s_addc_u32 s5, s5, 0")
            a("s_mov_b32 s6, 64")
            a("s_mov_b32 s7, 0x20000")
            a("s_mov_b64 exec, 1")
            a(f"v_mov_b32 v{vT}, 0")
            for n, i in enumerate(self.on):
                if n == 0:
                    a(f"s_not_b32 s{self.BASE + 4 * i}, s{self.BASE + 4 * i}")
                a(f"v_mov_b32 v{vD + n}, s{self.BASE + 4 * i}")
                a(f"buffer_atomic_umax v{vD + n}, v{vT}, s[4:7], 0 offen offset:{(self.kidx * 5 + n) * 4}")
            return
        a("s_waitcnt lgkmcnt(0)")
        a(f"s_lshl_b32 s{sT}, s2, 4")
        a(f"s_add_u32 s{sT}, s{sT}, s{sWv}")
        a(f"s_lshl_b32 s{sT}, s{sT}, 6")
        a(f"s_add_u32 s{sT}, s{sT}, {WS_STAMP + self.kidx * 0x80000}")
        a("s_mov_b64 exec, 1")
        for i in range(8):
            a(f"v_mov_b32 v{vD + i}, s{self.BASE + 4 * i}")
            a(f"v_mov_b32 v{vD + 8 + i}, s{self.BASE + 4 * i + 2}")
        a(f"v_mov_b32 v{vT}, 0")
        for i in range(4):
            a(f"buffer_store_dwordx4 {v(vD + 4 * i, 4)}, v{vT}, s[{SWS}:{SWS + 3}], s{sT} offen offset:{16 * i}")

WS_FLAG = 18 * MB
```

```python
import sys, json
import importlib
from common import *
HDR = open("concat_heads__linear_attn_block__softmax_full_mha__prompt.s.ref").read().split("; Override launch")[0]

def build(kernels, opts, out):
    bodies, descs, launches = [], [], []
    for k in kernels:
        m = importlib.import_module(k)
        b, d, l = m.gen(opts.get(k, {}))
        bodies.append(b); descs.append(d); launches.append(l)
    txt = HDR + "\n".join(launches) + "\n" + '.amdgcn_target "amdgcn-amd-amdhsa--gfx950"\n' + "".join(bodies) + "L_code_end:\n" + "".join(descs)
    open(out, "w").write(txt)
    return txt

if __name__ == "__main__":
    kernels = sys.argv[1].split(",")
    out = sys.argv[2]
    opts = json.loads(sys.argv[3]) if len(sys.argv) > 3 else {}
    build(kernels, opts, out)
```
